```python
import torch

def _softmax(x, axis=-1):
    return torch.softmax(x, dim=axis)
def _gelu(x):
    return torch.nn.functional.gelu(x, approximate="tanh")
def _silu(x):
    return torch.nn.functional.silu(x)
def _sigmoid(x):
    return torch.sigmoid(x)
def _layernorm(x, axis=-1, eps=1e-5):
    m = x.mean(dim=axis, keepdim=True)
    v = x.var(dim=axis, keepdim=True, unbiased=False)
    return (x - m) / torch.sqrt(v + eps)
def _scatter_add(tgt, idx, src, axis=0):
    return tgt.clone().index_add_(axis, idx, src)
def _segment_sum(src, seg, n):
    out = torch.zeros((n,) + src.shape[1:], dtype=src.dtype)
    return out.index_add_(0, seg, src)
def _pad(x, pw):
    flat = tuple(v for pair in reversed(pw) for v in pair)
    return torch.nn.functional.pad(x, flat)

kernel_name = 'standalone__kv_cache_quant_int4_int2_kv_with_per_channel_or_per_token_scales__sampling'

def setup_inputs():

    _w = (lambda a: (lambda t: t.to(torch.bfloat16) if t.is_floating_point() else t)(torch.as_tensor(a)))
    B = 32
    Sq = 4
    Skv = 2048
    Hq = 32
    Hkv = 16
    Dh = 128
    bits = 8
    G = 64
    if G <= 0 or G >= Skv:
        G = max(1, Skv // 2)
    Skv = (Skv // G) * G
    ngk = Skv // G
    qmax = (1 << bits) - 1
    return {
        "q": _w((lambda *s: torch.randn(*s, dtype=torch.bfloat16) * 0.2)(B, Hq, Sq, Dh)),
        "qk": _w(torch.randint(0, qmax + 1, (B, Hkv, Skv, Dh)).to(torch.int32)),
        "qv": _w(torch.randint(0, qmax + 1, (B, Hkv, Skv, Dh)).to(torch.int32)),
        "k_scales": _w(torch.abs((lambda *s: torch.randn(*s, dtype=torch.bfloat16) * 0.2)(B, Hkv, ngk, Dh)) * 0.05 + 0.02),
        "k_zeros": _w((lambda *s: torch.randn(*s, dtype=torch.bfloat16) * 0.2)(B, Hkv, ngk, Dh) + float(qmax) / 2.0),
        "v_scales": _w(torch.abs((lambda *s: torch.randn(*s, dtype=torch.bfloat16) * 0.05)(B, Hkv, Skv, 1)) * 0.05 + 0.02),
        "v_zeros": _w((lambda *s: torch.randn(*s, dtype=torch.bfloat16) * 0.05)(B, Hkv, Skv, 1) + float(qmax) / 2.0),
    }

def reference(q, qk, qv, k_scales, k_zeros, v_scales, v_zeros):
    B, Hq, Sq, Dh = q.shape
    Hkv, Skv = qk.shape[1], qk.shape[2]
    ngk = k_scales.shape[2]
    G = Skv // ngk
    ks = (lambda x, n, axis: torch.repeat_interleave(x, n, dim=axis))(k_scales, G, axis=2)
    kz = (lambda x, n, axis: torch.repeat_interleave(x, n, dim=axis))(k_zeros, G, axis=2)
    k = ((lambda x, dt: x.to(dt))(qk, q.dtype) - kz) * ks
    v = ((lambda x, dt: x.to(dt))(qv, q.dtype) - v_zeros) * v_scales
    rep = Hq // Hkv
    if rep > 1:
        k = (lambda x, n, axis: torch.repeat_interleave(x, n, dim=axis))(k, rep, axis=1)
        v = (lambda x, n, axis: torch.repeat_interleave(x, n, dim=axis))(v, rep, axis=1)
    scale = float(Dh) ** -0.5
    logits = torch.einsum("bhqd,bhkd->bhqk", q, k) * scale
    p = _softmax(logits, axis=-1)
    o = torch.einsum("bhqk,bhkd->bhqd", p, v)
    return o
```

```python
import re

def regs_of(op):
    op = op.strip()
    neg = op.startswith('-')
    if neg: op = op[1:]
    m = re.fullmatch(r'abs\((.*)\)', op)
    if m: op = m.group(1)
    m = re.fullmatch(r'([vsa])(\d+)', op)
    if m: return [(m.group(1), int(m.group(2)))]
    m = re.fullmatch(r'([vsa])\[(\d+):(\d+)\]', op)
    if m: return [(m.group(1), i) for i in range(int(m.group(2)), int(m.group(3)) + 1)]
    if op == 'vcc': return [('s', 106), ('s', 107)]
    if op == 'exec': return [('s', 126), ('s', 127)]
    if op == 'm0': return [('s', 124)]
    return []

TRANS = ('v_exp_f32', 'v_log_f32', 'v_rcp_f32', 'v_rsq_f32', 'v_sqrt_f32', 'v_sin_f32', 'v_cos_f32')

class Asm:
    def __init__(self):
        self.lines = []
        self.hist = []
        self.pos = 0
        self.nops = 0
    def raw(self, text):
        self.lines.append(text)
    def comment(self, t):
        self.lines.append('  ; ' + t)
    def _nop(self, n):
        while n > 0:
            k = min(n, 16)
            self.lines.append(f'  s_nop {k-1}')
            self.pos += k
            self.nops += k
            n -= k
    def flush(self):
        need = 0
        for h in self.hist:
            w = 0
            if h['kind'] == 'mfma': w = 8
            elif h['kind'] == 'valu': w = 5 if h['swr'] else 2
            elif h['kind'] == 'salu' and ('s', 124) in h['wr']: w = 1
            elif h['kind'] == 'vst': w = 2
            need = max(need, h['pos'] + 1 + w - self.pos)
        self._nop(need)
        self.hist = []
    def label(self, name):
        self.flush()
        self.lines.append(f'{name}:')
    def I(self, op, *ops, mods=''):
        ops = [str(o) for o in ops]
        kind = None; wr = []; rd = []; srcc = []; ab = []
        if op.startswith('v_mfma'):
            kind = 'mfma'; wr = regs_of(ops[0]); ab = regs_of(ops[1]) + regs_of(ops[2]); srcc = regs_of(ops[3]); rd = ab + srcc
        elif op.startswith('v_permlane') and 'swap' in op:
            kind = 'valu'; wr = regs_of(ops[0]) + regs_of(ops[1]); rd = list(wr)
        elif op.startswith('v_cmp'):
            kind = 'valu'; wr = regs_of(ops[0]); rd = sum((regs_of(o) for o in ops[1:]), [])
        elif op.startswith('v_'):
            kind = 'valu'; wr = regs_of(ops[0]); rd = sum((regs_of(o) for o in ops[1:]), [])
            if op.startswith('v_fmac') or op.startswith('v_pk_fmac'): rd += wr
            if op.startswith('v_cndmask') and len(ops) == 3: rd += regs_of('vcc')
        elif op.startswith('ds_read') or op.startswith('ds_bpermute') or op.startswith('ds_swizzle'):
            kind = 'lds'; wr = regs_of(ops[0]); rd = sum((regs_of(o) for o in ops[1:]), [])
        elif op.startswith('ds_'):
            kind = 'lds'; rd = sum((regs_of(o) for o in ops), [])
        elif op.startswith('buffer_load') or op.startswith('global_load'):
            kind = 'vmem'
            if 'lds' in mods.split() or '_lds_' in op:
                rd = sum((regs_of(o) for o in ops), []) + regs_of('m0')
            else:
                wr = regs_of(ops[0]); rd = sum((regs_of(o) for o in ops[1:]), [])
        elif op.startswith('buffer_store') or op.startswith('global_store') or op.startswith('buffer_atomic') or op.startswith('global_atomic'):
            kind = 'vst'; rd = sum((regs_of(o) for o in ops), [])
            if 'atomic' in op and 'sc0' in mods.split(): wr = regs_of(ops[0])
        elif op.startswith('s_'):
            kind = 'salu'
            if op in ('s_nop', 's_waitcnt', 's_barrier', 's_endpgm', 's_setprio', 's_sleep', 's_branch') or op.startswith('s_cbranch') or op.startswith('s_cmp'):
                rd = sum((regs_of(o) for o in ops), [])
            else:
                wr = regs_of(ops[0]); rd = sum((regs_of(o) for o in ops[1:]), [])
                if 'saveexec' in op: wr += regs_of('exec')
        else:
            raise ValueError(op)
        if op.startswith('s_cbranch') or op == 's_branch':
            self.flush()
        swr = [r for r in wr if r[0] == 's'] if kind == 'valu' else []
        is_trans = op.split('_e')[0] in TRANS or op in TRANS
        is_perm = op.startswith('v_permlane')
        is_dpp = 'row_' in mods or 'quad_perm' in mods or 'dpp' in op
        is_rl = op.startswith('v_readlane') or op.startswith('v_readfirstlane')
        rds = set(rd); wrs = set(wr)
        need = 0
        for h in self.hist:
            w = 0
            hw = h['wrs']
            if h['kind'] == 'valu':
                vw = {r for r in hw if r[0] != 's'}
                sw = {r for r in hw if r[0] == 's'}
                if kind == 'mfma' and vw & rds: w = max(w, 2)
                if kind == 'valu':
                    if (is_perm or is_dpp) and vw & rds: w = max(w, 2)
                    if is_rl and vw & rds: w = max(w, 1)
                    if h['trans'] and vw & rds: w = max(w, 1)
                    if sw & rds: w = max(w, 4 if is_rl else 2)
                if kind in ('vmem', 'vst') and sw & rds: w = max(w, 5)
                if kind == 'salu' and sw & rds: w = max(w, 1)
            elif h['kind'] == 'mfma':
                if kind == 'mfma':
                    if hw & set(ab): w = max(w, 8)
                    if hw & set(srcc):
                        w = max(w, 0 if (hw == set(srcc) and h['op'] == op) else 6)
                    elif hw & wrs: w = max(w, 8)
                elif kind in ('valu', 'lds', 'vmem', 'vst'):
                    if hw & (rds | wrs): w = max(w, 8)
                    if kind == 'valu' and set(h['srcc']) & wrs: w = max(w, 3)
                    if kind in ('lds', 'vmem') and (set(h['srcc']) | set(h['ab'])) & wrs: w = max(w, 3)
            elif h['kind'] == 'salu':
                if ('s', 124) in hw and kind in ('vmem', 'lds') and ('s', 124) in rds: w = max(w, 1)
            elif h['kind'] == 'vst':
                if h['wide'] and h['rds'] & wrs: w = max(w, 2)
            if w:
                need = max(need, h['pos'] + 1 + w - self.pos)
        if need > 0: self._nop(need)
        text = f'  {op} ' + ', '.join(ops) + (f' {mods}' if mods else '')
        self.lines.append(text.rstrip())
        self.hist.append(dict(kind=kind, op=op, wr=wr, wrs=wrs, rds=rds, srcc=srcc, ab=ab, swr=swr, trans=is_trans,
                              wide=('x4' in op or 'x3' in op), pos=self.pos))
        self.pos += 1
        self.hist = [h for h in self.hist if self.pos - h['pos'] < 24]
    def text(self):
        return '\n'.join(self.lines) + '\n'

def v(i, n=1):
    return f'v{i}' if n == 1 else f'v[{i}:{i+n-1}]'
def s(i, n=1):
    return f's{i}' if n == 1 else f's[{i}:{i+n-1}]'
```

```python
import sys, struct, math
from asmlib import Asm, v, s
MAIN = "standalone__kv_cache_quant_int4_int2_kv_with_per_channel_or_per_token_scales__sampling_kernel"
HDR = open("standalone__kv_cache_quant_int4_int2_kv_with_per_channel_or_per_token_scales__sampling.s.ref").read().split("; Override launch")[0]


DOC = """;
"""

def f32(x): return "0x%08x" % struct.unpack("<I", struct.pack("<f", x))[0]

def gen(W=20, flags="nt", diag=False, Wrec=28, ends=(), early_rel=True, dbgt=False, diag2=False, NS=16, cks=(), kcks=(), Wl=(19, 20, 21, 22), dflt=1, SP=4352, far=False, defer=False, stmods="", diag3=False, diag4=False, DW=0, rel1=0, diag5=False, pf=0, pfG=56, Wle=None, nE=0, WK=None, mix=None):
    nst = [0]
    NWG = 256
    SLOT = 32768
    RING = 2 * SLOT
    REC = RING
    MS = REC + 65536
    QA = MS + 8192; QP = QA + 4096; CP = QP + 2048; ST = CP + 128
    LDS = ST + 1024
    a = Asm(); I = a.I
    a.raw(HDR.rstrip())
    a.raw(f"; @launch grid=({NWG},1,1) block=(320,1,1) lds={LDS}")
    a.raw(DOC.rstrip())
    a.raw('.amdgcn_target "amdgcn-amd-amdhsa--gfx950"')
    a.raw(".text"); a.raw(f".globl {MAIN}"); a.raw(".p2align 8"); a.raw(f".type {MAIN},@function"); a.raw(f"{MAIN}:")
    I("s_cmp_ge_u32", "s2", NWG)
    I("s_cbranch_scc1", "L_end")
    I("s_load_dwordx16", s(4, 16), s(0, 2), 0)
    if dbgt:
        I("s_memrealtime", s(64, 2))
        I("s_load_dwordx2", s(72, 2), s(0, 2), 64)
    if diag5:
        I("s_memtime", s(64, 2))
        I("s_load_dwordx2", s(72, 2), s(0, 2), 72)
    if diag or diag3 or diag4:
        I("s_memrealtime", s(64, 2))
        I("s_load_dwordx2", s(72, 2), s(0, 2), 72)
    def stamp_store(regs, base):
        I("s_waitcnt", "lgkmcnt(0)")
        I("s_mov_b32", "s76", "s72"); I("s_and_b32", "s77", "s73", "0xffff"); I("s_mov_b32", "s78", "0x80000000"); I("s_mov_b32", "s79", "0x20000")
        I("s_lshl_b32", "s74", "s2", 7)
        I("v_mov_b32", "v1", 0)
        for k, r in enumerate(regs):
            I("v_mov_b32", "v2", s(r))
            I("buffer_store_dword", "v2", "v1", s(76, 4), "s74", mods=f"offen offset:{base+4*k}")
            I("s_nop", 4)
    I("s_load_dwordx2", s(80, 2), s(0, 2), 72)
    I("v_lshrrev_b32", "v1", 6, "v0")
    I("v_and_b32", "v0", 63, "v0")
    I("v_readfirstlane_b32", "s3", "v1")
    I("s_cmp_lg_u32", "s3", 0)
    I("s_cbranch_scc1", "L_cons")
    I("s_setprio", 3)
    I("v_lshlrev_b32", "v3", 4, "v0")
    I("v_and_b32", "v8", 15, "v0")
    I("v_and_b32", "v9", 7, "v0")
    I("s_lshl_b32", "s52", "s2", 13 if far else 14)
    I("s_lshl_b32", "s53", "s2", 12 if far else 13)
    I("v_lshlrev_b32", "v8", 4, "v8")
    I("v_lshlrev_b32", "v9", 4, "v9")
    I("v_add_u32", "v8", "s52", "v8")
    I("v_add_u32", "v9", "s53", "v9")
    I("v_cmp_gt_u32", "vcc", 32, "v0")
    I("v_cndmask_b32", "v8", "v9", "v8", "vcc")
    I("v_mov_b32", "v10", 128)
    I("v_mov_b32", "v11", 256)
    I("v_cndmask_b32", "v10", "v10", "v11", "vcc")
    I("v_mov_b32", "v11", 0)
    I("v_mov_b32", "v9", 0)
    I("v_cmp_le_u32", s(32, 2), 16, "v0")
    I("v_cmp_le_u32", s(34, 2), 32, "v0")
    I("v_cmp_le_u32", s(36, 2), 40, "v0")
    I("v_lshrrev_b32", "v4", 5, "v0")
    I("v_and_b32", "v5", 31, "v0")
    for j in range(8):
        I("v_add_u32", "v6", 2 * j, "v4")
        I("v_xor_b32", "v6", "v6", "v5")
        I("v_lshlrev_b32", "v6", 4, "v6")
        I("v_lshl_add_u32", v(16 + j), "v4", 9, "v6")
    I("s_lshl_b32", "s52", "s2", 11 if far else 12)
    I("s_add_u32", "s53", "s52", 256 * 2048 - 2048 if far else 0)
    I("v_mul_u32_u24", "v26", 8160, "v10")
    I("v_mov_b32", "v27", 0)
    I("s_mov_b32", "m0", QA)
    I("s_mov_b32", "s30", "0x100000"); I("s_mov_b32", "s31", "0x20000")
    def srd(d, p, n):
        I("s_mov_b32", s(d), s(p)); I("s_and_b32", s(d + 1), s(p + 1), "0xffff"); I("s_mov_b32", s(d + 2), hex(n)); I("s_mov_b32", s(d + 3), "0x20000")
    SQ, SK, SV, SO = 28, 20, 24, 48
    I("s_waitcnt", "lgkmcnt(0)")
    I("s_mov_b32", "s28", "s4"); I("s_and_b32", "s29", "s5", "0xffff")
    if diag5: I("s_memtime", s(66, 2))
    def dma(srdreg, vaddr, soff, imm):
        I("buffer_load_dwordx4", vaddr, s(srdreg, 4), soff, mods=f"offen offset:{imm} {flags} lds")
    for i in range(4): dma(SQ, "v3", "s52" if i < 2 else "s53", i * 1024)
    if diag5:
        I("s_waitcnt", "vmcnt(3)")
        I("s_memtime", s(68, 2))
        I("s_waitcnt", "vmcnt(0)")
        I("s_memtime", s(70, 2))
    I("v_mov_b32", "v12", "s10"); I("v_mov_b32", "v13", "s11")
    for (msk, p) in ((32, 12), (34, 14), (36, 16)):
        I("v_mov_b32", "v14", s(p)); I("v_mov_b32", "v15", s(p + 1))
        I("v_cndmask_b32", "v12", "v12", "v14", s(msk, 2))
        I("v_cndmask_b32", "v13", "v13", "v15", s(msk, 2))
    I("v_lshl_add_u64", v(12, 2), v(8, 2), 0, v(12, 2))
    I("s_mov_b32", "exec_hi", "0xffff")
    I("s_mov_b32", "s55", 64)
    I("s_mov_b32", "s54", REC)
    a.label("L_rec")
    I("s_mov_b32", "m0", "s54")
    I("s_waitcnt", f"vmcnt({Wrec-1})")
    I("global_load_lds_dwordx4", v(12, 2), "off", mods=flags)
    I("v_lshl_add_u64", v(12, 2), v(10, 2), 0, v(12, 2))
    I("s_add_u32", "s54", "s54", 1024)
    I("s_sub_u32", "s55", "s55", 1)
    if far:
        I("s_cmp_lg_u32", "s55", 32)
        I("s_cbranch_scc1", "L_rec1")
        I("v_lshl_add_u64", v(12, 2), v(26, 2), 0, v(12, 2))
        a.label("L_rec1")
    I("s_cmp_lg_u32", "s55", 0)
    I("s_cbranch_scc1", "L_rec")
    I("s_mov_b32", "exec_hi", -1)
    if diag: I("s_memrealtime", s(66, 2))
    srd(SK, 6, 0x20000000); srd(SV, 8, 0x20000000)
    I("s_mov_b32", "s54", 0)
    def block(srdreg, sw, Wv):
        for i in range(32):
            if i % 4 == 0:
                I("s_add_u32", "s52", "s53", i * 1024)
                I("s_add_u32", "m0", "s54", i * 1024)
            if Wv <= 32: I("s_waitcnt", f"vmcnt({Wv-1})")
            elif i >= 30: I("s_waitcnt", f"vmcnt(61)")
            if i == Wv - 1: I("s_barrier")
            dma(srdreg, v(16 + (i & 7)) if sw else "v3", "s52", (i % 4) * 1024)
        I("s_xor_b32", "s54", "s54", SLOT)
        I("s_add_u32", "s53", "s53", SLOT)
        I("s_sub_u32", "s55", "s55", 1)
        if far:
            I("s_cmp_eq_u32", "s55", 32)
            I("s_cselect_b32", "s57", 255 << 20, 0)
            I("s_add_u32", "s53", "s53", "s57")
        if Wv > 32:
            I("s_waitcnt", "vmcnt(32)")
            I("s_barrier")
    NCK = max(1, len(cks) + len(kcks))
    I("s_lshr_b32", "s57", "s2", (256 // NS).bit_length() - 1)
    I("s_mul_i32", "s57", "s57", SP * NCK)
    I("s_add_u32", "s82", "s80", "s57")
    I("s_addc_u32", "s83", "s81", 0)
    I("s_add_u32", "s82", "s82", 0x100000)
    I("s_addc_u32", "s83", "s83", 0)
    I("s_mov_b32", "s56", dflt)
    nend = ends[0][0] if ends else 0
    cidx = [0]
    for (nm, srdreg, sw, ck, stop) in (("k", SK, True, kcks, 0), ("v", SV, False, cks, nend)):
        I("s_lshl_b32", "s53", "s2", 20 if far else 21)
        I("s_mov_b32", "s55", 64)
        a.label(f"L_ld_{nm}")
        for (ri, rr, th) in ck:
            ci = cidx[0]; cidx[0] += 1
            I("s_cmp_lg_u32", "s55", ri)
            I("s_cbranch_scc1", f"L_c1_{ci}")
            I("s_mov_b32", "s84", 1)
            if mix:
                I("s_and_b32", "s57", "s2", 7)
                I("s_mul_i32", "s57", "s57", mix[ci])
                I("s_lshr_b32", "s58", "s2", 3)
                I("s_add_u32", "s57", "s57", "s58")
                I("s_and_b32", "s57", "s57", 31)
                I("s_mul_i32", "s57", "s57", SP * NCK)
                I("s_add_u32", "s57", "s57", 0x100000 + SP * ci)
                I("s_add_u32", "s86", "s80", "s57")
                I("s_addc_u32", "s87", "s81", 0)
                I("s_atomic_add", "s84", s(86, 2), "0x0", mods="glc")
            else:
                I("s_atomic_add", "s84", s(82, 2), hex(SP * ci), mods="glc")
            a.label(f"L_c1_{ci}")
            I("s_cmp_lg_u32", "s55", rr)
            I("s_cbranch_scc1", f"L_c2_{ci}")
            I("s_waitcnt", "lgkmcnt(0)")
            I("s_mov_b32", "s56", 0)
            for k, t in enumerate(th):
                I("s_cmp_ge_u32", "s84", t)
                I("s_cselect_b32", "s56", k + 1, "s56")
            I("s_cmp_ge_u32", "s84", 256 // NS)
            I("s_cselect_b32", "s56", dflt, "s56")
            a.label(f"L_c2_{ci}")
        modes = list(range(len(Wl))) if (ck or (nm == "v" and kcks)) else [dflt]
        Wall = list(Wl)
        if nm == "k" and WK: Wall[dflt] = WK
        if nm == "v" and Wle:
            I("s_cmp_le_u32", "s55", nE)
            I("s_cselect_b32", "s57", len(Wl), 0)
            I("s_add_u32", "s57", "s57", "s56")
            modes = modes + [len(Wl) + m for m in range(len(Wle))]
            Wall = Wall + list(Wle)
            sel = "s57"
        else:
            sel = "s56"
        order = [dflt] + [m for m in modes if m != dflt]
        for mi in order[1:]:
            I("s_cmp_eq_u32", sel, mi)
            I("s_cbranch_scc1", f"L_ld_{nm}_{mi}")
        for mi in order:
            a.label(f"L_ld_{nm}_{mi}")
            block(srdreg, sw, Wall[mi])
            I("s_cmp_lg_u32", "s55", stop)
            I("s_barrier")
            I("s_cbranch_scc1", f"L_ld_{nm}")
            if mi != order[-1]: I("s_branch", f"L_ld_{nm}_done")
        a.label(f"L_ld_{nm}_done")
        if nm == "k":
            if diag: I("s_memrealtime", s(68, 2))
            I("s_mov_b32", "s56", dflt)
    assert cidx[0] <= 16
    for si, (thr, Wv) in enumerate(ends):
        stop = ends[si + 1][0] if si + 1 < len(ends) else 0
        a.label(f"L_ld_e{si}")
        block(SV, False, Wv)
        I("s_cmp_lg_u32", "s55", stop)
        I("s_barrier")
        I("s_cbranch_scc1", f"L_ld_e{si}")
    I("s_waitcnt", "vmcnt(0)")
    if diag: I("s_memrealtime", s(70, 2))
    I("s_barrier")
    if diag or diag5: stamp_store([64, 66, 68, 70, 70], 0)
    if diag2: stamp_store([88 + k for k in range(nst[0])], 32)
    I("s_endpgm")
    a.label("L_cons")
    vC, vG, vC7 = 1, 2, 3
    vK, vV = 4, 8
    vQpR, vQpW, vCpR, vCpW, vKS, vVS, vQ, vCombW, vStW, vCombR, vStR, vOut, vPW, vMW = range(10, 24)
    vM, vL, vCorr, vPad = 24, 25, 26, 27
    vAl, vCs = 28, 29
    T = 30
    QF = 40; X = 48; A = 80; QPr = 96; S = 112; CP4 = 116; VS2 = 120; VZ2 = 122; P = 124; PT = 126
    KS8 = 130; KZ8 = 134; KSF = 138; QPN = 146; CPP = 150; MN = 154
    ACC = 160; ACCC = 192
    NV = 200
    I("s_sub_u32", "s3", "s3", 1)
    I("v_and_b32", v(vC), 15, "v0")
    I("v_lshrrev_b32", v(vG), 4, "v0")
    I("v_and_b32", v(vC7), 7, "v0")
    I("s_lshl_b32", "s56", "s3", 13)
    I("v_lshlrev_b32", v(T), 9, v(vC))
    I("v_add_u32", v(T), "s56", v(T))
    for i0 in range(2):
        for h in range(2):
            I("v_lshlrev_b32", v(T + 1), 1, v(vG))
            I("v_add_u32", v(T + 1), h + 8 * i0, v(T + 1))
            I("v_xor_b32", v(T + 1), v(T + 1), v(vC))
            I("v_lshl_add_u32", v(vK + h + 2 * i0), v(T + 1), 4, v(T))
    I("v_lshlrev_b32", v(T), 11, v(vG))
    I("v_add_u32", v(T), "s56", v(T))
    I("v_lshl_add_u32", v(vV), v(vC), 4, v(T))
    I("v_lshlrev_b32", v(T), 7, v(vG))
    I("v_lshl_add_u32", v(T), v(vC7), 4, v(T))
    I("v_add_u32", v(vQpR), QP, v(T))
    I("s_lshl_b32", "s57", "s3", 9)
    I("v_add_u32", v(vQpW), "s57", v(vQpR))
    I("v_lshlrev_b32", v(T), 4, v(vC7))
    I("v_add_u32", v(vCpR), CP, v(T))
    I("s_lshl_b32", "s57", "s3", 2)
    I("v_add_u32", v(vCpW), "s57", v(vCpR))
    I("s_lshl_b32", "s57", "s3", 6)
    I("s_add_u32", "s58", "s57", REC)
    I("v_lshlrev_b32", v(T), 4, v(vG))
    I("v_add_u32", v(vKS), "s58", v(T))
    I("s_add_u32", "s58", "s57", QA)
    I("v_add_u32", v(T), "s58", v(T))
    I("v_lshl_add_u32", v(vQ), v(vC7), 8, v(T))
    I("s_lshl_b32", "s57", "s3", 5)
    I("s_add_u32", "s58", "s57", REC + 512)
    I("v_lshlrev_b32", v(T), 3, v(vG))
    I("v_add_u32", v(vVS), "s58", v(T))
    I("s_lshl_b32", "s57", "s3", 8)
    I("s_add_u32", "s58", "s57", REC)
    I("v_lshlrev_b32", v(T), 6, v(vG))
    I("v_lshl_add_u32", v(T), v(vC7), 3, v(T))
    I("v_add_u32", v(vPW), "s58", v(T))
    I("s_lshl_b32", "s57", "s3", 5)
    I("s_add_u32", "s58", "s57", MS)
    I("v_lshlrev_b32", v(T), 2, v(vC7))
    I("v_add_u32", v(vMW), "s58", v(T))
    CW = 156
    I("s_lshl_b32", "s57", "s3", 12)
    I("s_add_u32", "s57", "s57", REC)
    I("v_lshlrev_b32", v(T), 9, v(vC7))
    I("v_add_u32", v(T), "s57", v(T))
    I("v_lshrrev_b32", v(T + 1), 3, v(vC))
    I("v_lshlrev_b32", v(T + 1), 4, v(T + 1))
    I("v_lshl_add_u32", v(T + 1), v(vG), 2, v(T + 1))
    for rho in range(4):
        I("v_add_u32", v(T + 2), rho, v(T + 1))
        I("v_xor_b32", v(T + 2), v(T + 2), v(vC7))
        I("v_lshl_add_u32", v(CW + rho), v(T + 2), 4, v(T))
    I("v_cmp_le_u32", s(40, 2), 8, v(vC))
    I("s_lshl_b32", "s57", "s3", 4)
    I("s_add_u32", "s57", "s57", ST)
    I("v_lshlrev_b32", v(T), 6, v(vC7))
    I("v_add_u32", v(vStW), "s57", v(T))
    I("v_lshrrev_b32", v(T), 5, "v0")
    I("s_lshl_b32", "s57", "s3", 1)
    I("v_add_u32", v(T), "s57", v(T))
    I("v_and_b32", v(T + 1), 31, "v0")
    I("v_lshlrev_b32", v(T + 2), 9, v(T))
    I("v_xor_b32", v(T + 3), v(T + 1), v(T))
    I("v_lshl_add_u32", v(T + 2), v(T + 3), 4, v(T + 2))
    I("v_add_u32", v(vCombR), REC, v(T + 2))
    I("v_lshlrev_b32", v(T + 2), 6, v(T))
    I("v_add_u32", v(vStR), ST, v(T + 2))
    I("v_lshlrev_b32", v(T + 2), 8, v(T))
    I("v_lshl_add_u32", v(vOut), v(T + 1), 3, v(T + 2))
    I("s_waitcnt", "lgkmcnt(0)")
    if pf & 1:
        I("s_lshl_b32", "s57", "s2", 21)
        I("v_mov_b32", v(T), "s57")
        I("s_cmp_lg_u32", "s3", 1)
        I("s_cbranch_scc1", "L_nopf1")
        I("s_mov_b64", "exec", 1)
        I("global_load_dword", "v199", v(T), s(6, 2), mods="nt")
        I("s_mov_b64", "exec", -1)
        a.label("L_nopf1")
    srd(SO, 18, 0x100000)
    if cks or kcks:
        I("s_cmp_ge_u32", "s2", NS)
        I("s_cbranch_scc1", "L_noinit")
        I("s_cmp_lg_u32", "s3", 0)
        I("s_cbranch_scc1", "L_noinit")
        I("s_mul_i32", "s57", "s2", SP * NCK)
        I("s_add_u32", "s82", "s80", "s57")
        I("s_addc_u32", "s83", "s81", 0)
        I("s_add_u32", "s82", "s82", 0x100000)
        I("s_addc_u32", "s83", "s83", 0)
        I("v_mul_u32_u24", v(T), SP, "v0")
        I("v_mov_b32", v(T + 2), 0)
        I("s_mov_b64", "exec", (1 << NCK) - 1)
        I("global_store_dword", v(T), v(T + 2), s(82, 2), mods="sc0 sc1")
        I("s_mov_b64", "exec", -1)
        a.label("L_noinit")
    I("s_lshl_b32", "s59", "s2", 11 if far else 12)
    I("s_mov_b32", "s60", 0)
    I("s_mov_b32", "s61", f32(128 ** -0.5 * math.log2(math.e)))
    I("s_mov_b32", "s62", "0xffff0000")
    I("s_mov_b32", "s63", SLOT)
    NEG = f32(-3.0e38)

    def cbar(kind, ph):
        if not diag4:
            I("s_barrier"); return
        b = 42 + ph * 3 if False else None
        R = {(0, 0): 66, (1, 0): 69, (0, 1): 88, (1, 1): 91}[(kind, ph)]
        I("s_waitcnt", "lgkmcnt(0)")
        I("s_memtime", s(94, 2))
        I("s_waitcnt", "lgkmcnt(0)")
        I("s_sub_u32", "s96", "s94", "s97")
        I("s_max_u32", s(R), s(R), "s96")
        I("s_add_u32", s(R + 1), s(R + 1), "s96")
        I("s_barrier")
        I("s_memtime", s(98, 2))
        I("s_waitcnt", "lgkmcnt(0)")
        I("s_sub_u32", "s96", "s98", "s94")
        I("s_cmp_lt_u32", "s96", 100)
        I("s_addc_u32", s(R + 2), s(R + 2), 0)
        I("s_mov_b32", "s97", "s98")
    if diag4:
        for r in list(range(66, 72)) + list(range(88, 94)): I("s_mov_b32", s(r), 0)
        I("s_memtime", s(98, 2)); I("s_waitcnt", "lgkmcnt(0)"); I("s_mov_b32", "s97", "s98")
    def load_q(off):
        I("ds_read_b128", v(T, 4), v(vQ), mods=f"offset:{off}")
        I("s_waitcnt", "lgkmcnt(0)")
        for k in range(4):
            I("v_lshlrev_b32", v(QF + 2 * k), 16, v(T + k))
            I("v_and_b32", v(QF + 2 * k + 1), "s62", v(T + k))
        for k in range(8): I("v_mul_f32", v(QF + k), "s61", v(QF + k))
    def prep_compute():
        for k in range(4):
            I("v_lshlrev_b32", v(KSF + 2 * k), 16, v(KS8 + k))
            I("v_and_b32", v(KSF + 2 * k + 1), "s62", v(KS8 + k))
        for k in range(8): I("v_mul_f32", v(KSF + k), v(QF + k), v(KSF + k))
        for k in range(4): I("v_cvt_pk_bf16_f32", v(QPN + k), v(KSF + 2 * k), v(KSF + 2 * k + 1))
        I("v_mfma_f32_16x16x32_bf16", v(CPP, 4), v(KZ8, 4), v(QPN, 4), 0)
        I("v_add_u32", v(vKS), 1024, v(vKS))
    def prep_write():
        I("ds_write_b128", v(vQpW), v(QPN, 4))
        I("ds_write_b32", v(vCpW), v(CPP))
    FW = QPr; FC = QPr + 4
    def weights(stoff):
        R = X
        for w in range(4):
            I("ds_read_b128", v(R + 4 * w, 4), v(vStR), mods=f"offset:{stoff + 16*w}")
        I("s_waitcnt", "lgkmcnt(0)")
        I("v_max3_f32", v(T), v(R), v(R + 4), v(R + 8))
        I("v_max_f32", v(T), v(T), v(R + 12))
        for w in range(4): I("v_sub_f32", v(FW + w), v(R + 4 * w), v(T))
        for w in range(4): I("v_exp_f32", v(FW + w), v(FW + w))
        I("v_mul_f32", v(T + 5), v(FW), v(R + 1))
        for w in range(1, 4): I("v_fmac_f32", v(T + 5), v(FW + w), v(R + 4 * w + 1))
        I("v_rcp_f32", v(T + 5), v(T + 5))
        for w in range(4): I("v_mul_f32", v(FW + w), v(FW + w), v(T + 5))
        I("v_mul_f32", v(FC), v(FW), v(R + 2))
        for w in range(1, 4): I("v_fmac_f32", v(FC), v(FW + w), v(R + 4 * w + 2))
    OUT0 = 196
    def combine(first=False):
        R = X
        for w in range(4):
            I("ds_read_b128", v(R + 4 * w, 4), v(vCombR), mods=f"offset:{4096*w}")
        for w in range(4):
            I("s_waitcnt", f"lgkmcnt({3-w})")
            for j in range(4):
                if w == 0: I("v_fma_f32", v(T + 6 + j), v(FW), v(R + j), f"-{v(FC)}")
                else: I("v_fmac_f32", v(T + 6 + j), v(FW + w), v(R + 4 * w + j))
        D = OUT0 if (defer and first) else T
        I("v_cvt_pk_bf16_f32", v(D), v(T + 6), v(T + 7))
        I("v_cvt_pk_bf16_f32", v(D + 1), v(T + 8), v(T + 9))
        if defer and first: return
        I("buffer_store_dwordx2", v(T, 2), v(vOut), s(SO, 4), "s59", mods=("offen " + stmods).strip())
        I("s_add_u32", "s59", "s59", 256 * 2048 if far else 2048)

    I("v_mov_b32", v(vM), NEG)
    I("v_mov_b32", v(vL), 0)
    I("v_mov_b32", v(vPad), 0)
    for r in range(ACC, ACCC + 4): I("v_mov_b32", v(r), 0)
    I("s_barrier")
    I("ds_read_b128", v(KS8, 4), v(vKS))
    I("ds_read_b128", v(KZ8, 4), v(vKS), mods="offset:256")
    load_q(0)
    prep_compute()
    prep_write()
    I("s_waitcnt", "lgkmcnt(0)")
    I("s_barrier")
    a.label("L_p1")
    cbar(0, 0)
    for i in range(4):
        I("ds_read_b128", v(QPr + 4 * i, 4), v(vQpR), mods=f"offset:{512*i}")
        for h in range(2):
            I("ds_read_b128", v(X + 8 * i + 4 * h, 4), v(vK + h + 2 * (i & 1)), mods=f"offset:{256*(i>>1)}")
    I("ds_read_b128", v(CP4, 4), v(vCpR))
    I("ds_read_b64", v(VS2, 2), v(vVS))
    I("ds_read_b64", v(VZ2, 2), v(vVS), mods="offset:128")
    for k in range(4): I("v_xor_b32", v(vK + k), "s63", v(vK + k))
    I("v_add_u32", v(vVS), 1024, v(vVS))
    for i in range(4):
        if rel1 in (3, 4):
            if i == 0: I("s_waitcnt", "lgkmcnt(12)")
            if i == rel1 - 2:
                I("s_waitcnt", "lgkmcnt(0)")
                cbar(1, 0)
                I("ds_read_b128", v(KS8, 4), v(vKS))
                I("ds_read_b128", v(KZ8, 4), v(vKS), mods="offset:256")
            elif 0 < i < rel1 - 2: I("s_waitcnt", f"lgkmcnt({12-3*i})")
        else:
            I("s_waitcnt", f"lgkmcnt({[12, 11, 8, 5][i]})")
            if i == 0:
                I("ds_read_b128", v(KS8, 4), v(vKS))
                I("ds_read_b128", v(KZ8, 4), v(vKS), mods="offset:256")
        for e in range(8): I("v_cvt_f32_i32", v(X + 8 * i + e), v(X + 8 * i + e))
        for k in range(4): I("v_cvt_pk_bf16_f32", v(A + 4 * i + k), v(X + 8 * i + 2 * k), v(X + 8 * i + 2 * k + 1))
        I("v_mfma_f32_16x16x32_bf16", v(S, 4), v(A + 4 * i, 4), v(QPr + 4 * i, 4), v(S, 4) if i else 0)
    I("s_waitcnt", "lgkmcnt(0)")
    if rel1 == 1: cbar(1, 0)
    I("v_add_f32", v(CP4), v(CP4), v(CP4 + 1))
    I("v_add_f32", v(CP4 + 2), v(CP4 + 2), v(CP4 + 3))
    I("v_add_f32", v(vCs), v(CP4), v(CP4 + 2))
    I("v_lshlrev_b32", v(T + 4), 16, v(VS2))
    I("v_and_b32", v(T + 5), "s62", v(VS2))
    I("v_lshlrev_b32", v(T + 6), 16, v(VS2 + 1))
    I("v_and_b32", v(T + 7), "s62", v(VS2 + 1))
    I("v_max3_f32", v(T), v(S), v(S + 1), v(S + 2))
    I("v_max_f32", v(T), v(T), v(S + 3))
    I("v_mov_b32", v(T + 1), v(T))
    I("v_permlane32_swap_b32", v(T + 1), v(T))
    I("v_max_f32", v(T), v(T), v(T + 1))
    I("v_mov_b32", v(T + 1), v(T))
    I("v_permlane16_swap_b32", v(T + 1), v(T))
    I("v_max_f32", v(T), v(T), v(T + 1))
    I("v_sub_f32", v(T), v(T), v(vCs))
    I("v_max_f32", v(T), v(T), v(vM))
    I("v_sub_f32", v(vAl), v(vM), v(T))
    I("v_add_f32", v(T + 1), v(vCs), v(T))
    I("v_mov_b32", v(vM), v(T))
    I("v_mov_b32", v(MN), v(T))
    I("v_exp_f32", v(vAl), v(vAl))
    for k in range(4): I("v_sub_f32", v(PT + k), v(S + k), v(T + 1))
    for k in range(4): I("v_exp_f32", v(PT + k), v(PT + k))
    for r in range(ACCC, ACCC + 4): I("v_mul_f32", v(r), v(vAl), v(r))
    I("v_add_f32", v(T + 2), v(PT), v(PT + 1))
    I("v_add_f32", v(T + 3), v(PT + 2), v(PT + 3))
    I("v_add_f32", v(T + 2), v(T + 2), v(T + 3))
    I("v_fma_f32", v(vL), v(vL), v(vAl), v(T + 2))
    for k in range(4): I("v_mul_f32", v(PT + k), v(PT + k), v(T + 4 + k))
    I("v_cvt_pk_bf16_f32", v(P), v(PT), v(PT + 1))
    I("v_cvt_pk_bf16_f32", v(P + 1), v(PT + 2), v(PT + 3))
    I("v_mfma_f32_16x16x16_bf16", v(ACCC, 4), v(VZ2, 2), v(P, 2), v(ACCC, 4))
    if rel1 == 2: cbar(1, 0)
    I("s_and_b32", "s57", "s60", 31)
    I("s_cmp_lg_u32", "s57", 31)
    I("s_cbranch_scc1", "L_p1_nofin")
    I("v_mov_b32", v(T + 1), v(vL))
    I("v_permlane32_swap_b32", v(T + 1), v(vL))
    I("v_add_f32", v(vL), v(vL), v(T + 1))
    I("v_mov_b32", v(T + 1), v(vL))
    I("v_permlane16_swap_b32", v(T + 1), v(vL))
    I("v_add_f32", v(vL), v(vL), v(T + 1))
    I("v_mov_b32", v(vCorr), v(ACCC))
    I("ds_write_b128", v(vStW), v(vM, 4))
    I("v_add_u32", v(vStW), 512, v(vStW))
    load_q(2048)
    I("v_mov_b32", v(vM), NEG)
    I("v_mov_b32", v(vL), 0)
    for r in range(ACCC, ACCC + 4): I("v_mov_b32", v(r), 0)
    a.label("L_p1_nofin")
    prep_compute()
    I("s_add_u32", "s60", "s60", 1)
    if rel1 == 0: cbar(1, 0)
    I("ds_write_b64", v(vPW), v(P, 2))
    I("ds_write_b32", v(vMW), v(MN))
    prep_write()
    if pf & 2:
        I("s_lshl_b32", "s57", "s3", 8)
        I("s_add_u32", "s57", "s57", "s60")
        I("s_cmp_lg_u32", "s57", 256 + pfG)
        I("s_cbranch_scc1", "L_nopf2")
        I("s_lshl_b32", "s57", "s2", 21)
        I("v_mov_b32", v(T), "s57")
        I("s_mov_b64", "exec", 1)
        I("global_load_dword", "v199", v(T), s(8, 2), mods="nt")
        I("s_mov_b64", "exec", -1)
        a.label("L_nopf2")
    I("v_add_u32", v(vPW), 1024, v(vPW))
    I("v_add_u32", v(vMW), 128, v(vMW))
    I("s_cmp_lg_u32", "s60", 64)
    I("s_waitcnt", "lgkmcnt(0)")
    I("s_cbranch_scc1", "L_p1")
    I("v_subrev_u32", v(vPW), 65536, v(vPW))
    I("v_subrev_u32", v(vMW), 8192, v(vMW))
    I("s_mov_b32", "s60", 0)
    def fetch_p():
        I("ds_read_b64", v(P, 2), v(vPW))
        I("ds_read_b32", v(MN), v(vMW))
        I("v_add_u32", v(vPW), 1024, v(vPW))
        I("v_add_u32", v(vMW), 128, v(vMW))
        I("s_waitcnt", "lgkmcnt(0)")
        I("v_sub_f32", v(vAl), v(vM), v(MN))
        I("v_exp_f32", v(vAl), v(vAl))
        I("v_mov_b32", v(vM), v(MN))
        for r in range(ACC, ACC + 32): I("v_mul_f32", v(r), v(vAl), v(r))
    fetch_p()
    a.label("L_p2")
    cbar(0, 1)
    if diag3:
        I("s_memtime", s(66, 2))
        I("s_waitcnt", "lgkmcnt(0)")
    for h in range(2):
        for e in range(4):
            I("ds_read_b128", v(X + (2 * e + h) * 4, 4), v(vV), mods=f"offset:{512*e+256*h}")
    I("v_xor_b32", v(vV), "s63", v(vV))
    for h in range(2):
        I("s_waitcnt", f"lgkmcnt({4-4*h})")
        if h == 1 and early_rel: cbar(1, 1)
        for j in range(4):
            for e in range(4): I("v_cvt_f32_i32", v(X + (2 * e + h) * 4 + j), v(X + (2 * e + h) * 4 + j))
            ar = A + (4 * h + j) * 2
            I("v_cvt_pk_bf16_f32", v(ar), v(X + (0 + h) * 4 + j), v(X + (2 + h) * 4 + j))
            I("v_cvt_pk_bf16_f32", v(ar + 1), v(X + (4 + h) * 4 + j), v(X + (6 + h) * 4 + j))
            if j > 0:
                jj = j - 1
                I("v_mfma_f32_16x16x16_bf16", v(ACC + 16 * h + 4 * jj, 4), v(A + (4 * h + jj) * 2, 2), v(P, 2), v(ACC + 16 * h + 4 * jj, 4))
        I("v_mfma_f32_16x16x16_bf16", v(ACC + 16 * h + 12, 4), v(A + (4 * h + 3) * 2, 2), v(P, 2), v(ACC + 16 * h + 12, 4))
    if not early_rel: I("s_barrier")
    I("s_cmp_lg_u32", "s60", 32)
    I("s_cbranch_scc1", "L_p2_nocomb")
    combine(True)
    weights(512)
    a.label("L_p2_nocomb")
    I("s_cmp_lg_u32", "s60", 4)
    I("s_cbranch_scc1", "L_p2_now0")
    weights(0)
    a.label("L_p2_now0")
    I("s_and_b32", "s57", "s60", 31)
    I("s_cmp_lg_u32", "s57", 31)
    I("s_cbranch_scc1", "L_p2_nofin")
    for rho in range(4):
        for j in range(4):
            I("v_cndmask_b32", v(X + rho * 4 + j), v(ACC + 4 * j + rho), v(ACC + 16 + 4 * j + rho), s(40, 2))
        I("ds_write_b128", v(CW + rho), v(X + rho * 4, 4))
    I("s_cmp_eq_u32", "s60", 63)
    I("s_cbranch_scc1", "L_fin")
    I("v_mov_b32", v(vM), NEG)
    for r in range(ACC, ACC + 32): I("v_mov_b32", v(r), 0)
    a.label("L_p2_nofin")
    fetch_p()
    I("s_add_u32", "s60", "s60", 1)
    I("s_branch", "L_p2")
    a.label("L_fin")
    if defer:
        I("buffer_store_dwordx2", v(OUT0, 2), v(vOut), s(SO, 4), "s59", mods="offen")
        I("s_add_u32", "s59", "s59", 256 * 2048 if far else 2048)
    I("s_waitcnt", "lgkmcnt(0)")
    if diag3: I("s_memtime", s(68, 2))
    I("s_barrier")
    if diag3: I("s_memtime", s(70, 2))
    if diag3: I("s_waitcnt", "lgkmcnt(0)")
    combine()
    if diag3:
        I("s_memtime", s(88, 2))
        I("s_waitcnt", "vmcnt(0)")
        I("s_memtime", s(90, 2))
        I("s_cmp_lg_u32", "s3", 3)
        I("s_cbranch_scc1", "L_end")
        stamp_store([66, 68, 70, 88, 90], 0)
    if diag:
        I("s_waitcnt", "vmcnt(0)")
        I("s_memrealtime", s(66, 2))
        I("s_cmp_lg_u32", "s3", 0)
        I("s_cbranch_scc1", "L_end")
        stamp_store([64, 66], 16)
    if diag4:
        I("s_cmp_lg_u32", "s3", DW)
        I("s_cbranch_scc1", "L_end")
        stamp_store(list(range(66, 72)) + list(range(88, 94)), 0)
    if dbgt:
        I("s_waitcnt", "vmcnt(0)")
        I("s_memrealtime", s(66, 2))
        I("s_cmp_lg_u32", "s3", 0)
        I("s_cbranch_scc1", "L_end")
        I("s_waitcnt", "lgkmcnt(0)")
        I("s_not_b32", "s64", "s64")
        I("v_mov_b32", "v1", 0)
        I("v_mov_b32", "v2", "s64")
        I("v_mov_b32", "v3", "s66")
        I("s_mov_b64", "exec", 1)
        I("global_atomic_umax", "v1", "v2", s(72, 2))
        I("global_atomic_umax", "v1", "v3", s(72, 2), mods="offset:4")
    a.label("L_end")
    I("s_endpgm")
    a.raw('.section .rodata,"a"'); a.raw(".p2align 6"); a.raw(f".amdhsa_kernel {MAIN}")
    a.raw(f"  .amdhsa_next_free_vgpr {NV}"); a.raw("  .amdhsa_next_free_sgpr 102"); a.raw(f"  .amdhsa_accum_offset {NV}")
    a.raw("  .amdhsa_group_segment_fixed_size 0"); a.raw("  .amdhsa_kernarg_size 80"); a.raw("  .amdhsa_user_sgpr_count 2")
    a.raw("  .amdhsa_user_sgpr_kernarg_segment_ptr 1"); a.raw("  .amdhsa_system_sgpr_workgroup_id_x 1"); a.raw(".end_amdhsa_kernel")
    return a.text(), LDS

if __name__ == "__main__":
    import build
    name = sys.argv[1]
    kw = eval("dict(" + (sys.argv[2] if len(sys.argv) > 2 else "") + ")")
    txt, lds = gen(diag=("diag" in name), **kw)
    open(name + ".s", "w").write(txt)
    print(build.build(name + ".s"))
```

```python
import sys
MAIN = "standalone__kv_cache_quant_int4_int2_kv_with_per_channel_or_per_token_scales__sampling_kernel"
def perm(kind, n):
    idx = list(range(n))
    b = n.bit_length() - 1
    if kind == "lin": return idx
    if kind == "rev": return [int(format(i, f"0{b}b")[::-1], 2) for i in idx]
    if kind.startswith("s"):
        m = int(kind[1:]); return [(i % m) * (n // m) + i // m for i in idx]
    if kind.startswith("p"):
        m = int(kind[1:]); h = n // 2
        base = [(i % m) * (h // m) + i // m for i in range(h)]
        return [2 * x + k for x in base for k in (0, 1)]
    if kind.startswith("q"):
        m = int(kind[1:]); h = n // 4
        base = [(i % m) * (h // m) + i // m for i in range(h)]
        return [4 * x + k for x in base for k in range(4)]
def gen(W=20, kind="lin", n=32, flags="nt"):
    nwg = 256
    o = []
    A = o.append
    A(f"; @launch grid=({nwg},1,1) block=(64,1,1) lds=98304")
    A('.amdgcn_target "amdgcn-amd-amdhsa--gfx950"')
    A(".text"); A(f".globl {MAIN}"); A(".p2align 8"); A(f".type {MAIN},@function"); A(f"{MAIN}:")
    A(f"  s_cmp_ge_u32 s2, {nwg}")
    A("  s_cbranch_scc1 L_done")
    A("  s_load_dwordx4 s[4:7], s[0:1], 8")
    A("  s_load_dwordx2 s[16:17], s[0:1], 72")
    A("  s_memrealtime s[64:65]")
    A("  v_and_b32 v2, 63, v0")
    A("  v_lshlrev_b32 v3, 4, v2")
    A("  s_waitcnt lgkmcnt(0)")
    A("  s_mov_b32 s8, s4"); A("  s_and_b32 s9, s5, 0xffff"); A("  s_mov_b32 s10, 0x20000000"); A("  s_mov_b32 s11, 0x20000")
    A("  s_mov_b32 s12, s6"); A("  s_and_b32 s13, s7, 0xffff"); A("  s_mov_b32 s14, 0x20000000"); A("  s_mov_b32 s15, 0x20000")
    A("  s_mov_b32 s20, s16"); A("  s_and_b32 s21, s17, 0xffff"); A("  s_mov_b32 s22, 0x80000000"); A("  s_mov_b32 s23, 0x20000")
    P = perm(kind, n)
    for nm, srd in (("k", 8), ("v", 12)):
        A(f"  s_lshl_b32 s26, s2, 21")
        A(f"  s_mov_b32 s27, {2048 // n}")
        A(f"L_{nm}:")
        for i in range(n):
            p = P[i]
            A(f"  s_add_u32 s30, s26, {p*1024}")
            A(f"  s_mov_b32 m0, {p*1024}")
            A(f"  s_waitcnt vmcnt({W-1})")
            A(f"  buffer_load_dwordx4 v3, s[{srd}:{srd+3}], s30 offen {flags} lds")
        A(f"  s_add_u32 s26, s26, {n*1024}")
        A("  s_sub_u32 s27, s27, 1"); A("  s_cmp_lg_u32 s27, 0"); A(f"  s_cbranch_scc1 L_{nm}")
        if nm == "k": A("  s_memrealtime s[68:69]")
    A("  s_waitcnt vmcnt(0)")
    A("  s_memrealtime s[70:71]")
    A("  s_waitcnt lgkmcnt(0)")
    A("  v_mov_b32 v8, s64"); A("  v_mov_b32 v9, s64"); A("  v_mov_b32 v10, s68"); A("  v_mov_b32 v11, s70")
    A(f"  s_lshl_b32 s28, s2, 7")
    A("  v_mov_b32 v4, 0")
    A("  buffer_store_dwordx4 v[8:11], v4, s[20:23], s28 offen")
    A("L_done:")
    A("  s_endpgm")
    nv = 32
    A('.section .rodata,"a"'); A(".p2align 6"); A(f".amdhsa_kernel {MAIN}")
    A(f"  .amdhsa_next_free_vgpr {nv}"); A("  .amdhsa_next_free_sgpr 80"); A(f"  .amdhsa_accum_offset {(nv+3)//4*4}")
    A("  .amdhsa_group_segment_fixed_size 0"); A("  .amdhsa_kernarg_size 80"); A("  .amdhsa_user_sgpr_count 2")
    A("  .amdhsa_user_sgpr_kernarg_segment_ptr 1"); A("  .amdhsa_system_sgpr_workgroup_id_x 1"); A(".end_amdhsa_kernel")
    return "\n".join(o) + "\n"

if __name__ == "__main__":
    import build, json
    cfgs = []
    nproc = int(sys.argv[1])
    for spec in sys.argv[2:]:
        W, kind, n = spec.split(",")
        name = f"d4_diag_W{W}_{kind}_{n}"
        open(name + ".s", "w").write(gen(int(W), kind, int(n)))
        sp = build.build(name + ".s")
        cfgs.append((name, sp))
    with open("run2.sh", "w") as f:
        f.write(f"for i in $(seq 1 {nproc}); do echo \"--- proc $i\"\n")
        f.write("timeout 100 ./bench2 15 0 1024 " + " ".join(f"{n}.co,256:64:98304" for n, _ in cfgs) + "\ndone\n")
    print(json.dumps(["work/bench2", "work/run2.sh"] + [f"work/{n}.co" for n, _ in cfgs]))
```
